```python
import torch

def _softmax(x, axis=-1):
    return torch.softmax(x, dim=axis)
def _gelu(x):
    return torch.nn.functional.gelu(x, approximate="tanh")
def _silu(x):
    return torch.nn.functional.silu(x)
def _sigmoid(x):
    return torch.sigmoid(x)
def _layernorm(x, axis=-1, eps=1e-5):
    m = x.mean(dim=axis, keepdim=True)
    v = x.var(dim=axis, keepdim=True, unbiased=False)
    return (x - m) / torch.sqrt(v + eps)
def _scatter_add(tgt, idx, src, axis=0):
    return tgt.clone().index_add_(axis, idx, src)
def _segment_sum(src, seg, n):
    out = torch.zeros((n,) + src.shape[1:], dtype=src.dtype)
    return out.index_add_(0, seg, src)
def _pad(x, pw):
    flat = tuple(v for pair in reversed(pw) for v in pair)
    return torch.nn.functional.pad(x, flat)

kernel_name = 'sequential_preLN__softmax_full_mha__geglu_ffn__prompt'

def setup_inputs():

    _w = (lambda a: (lambda t: t.to(torch.bfloat16) if t.is_floating_point() else t)(torch.as_tensor(a)))
    def _A_setup():
        B, S, D = 1, 2048, 640
        return {
            "x": _w((lambda *s: torch.randn(*s, dtype=torch.bfloat16) * 0.05)(B, S, D)),
            "wqkv": _w((lambda *s: torch.randn(*s, dtype=torch.bfloat16) * 0.05)(D, 3 * D)),
            "wo": _w((lambda *s: torch.randn(*s, dtype=torch.bfloat16) * 0.05)(D, D)),
        }
    _A_in = _A_setup()

    def _B_setup():
        B, S, D, F = 1, 2048, 640, 1728
        return {
            "x": _w((lambda *s: torch.randn(*s, dtype=torch.bfloat16) * 0.05)(B, S, D)),
            "w_gate": _w((lambda *s: torch.randn(*s, dtype=torch.bfloat16) * 0.05)(D, F)),
            "w_up": _w((lambda *s: torch.randn(*s, dtype=torch.bfloat16) * 0.05)(D, F)),
            "w_down": _w((lambda *s: torch.randn(*s, dtype=torch.bfloat16) * 0.05)(F, D)),
        }
    _B_in = _B_setup()

    return {
        "A_x": _A_in["x"],
        "A_wqkv": _A_in["wqkv"],
        "A_wo": _A_in["wo"],
        "B_x": _B_in["x"],
        "B_w_gate": _B_in["w_gate"],
        "B_w_up": _B_in["w_up"],
        "B_w_down": _B_in["w_down"],
    }

def reference(A_x, A_wqkv, A_wo, B_x, B_w_gate, B_w_up, B_w_down):
    def _A_ref(x, wqkv, wo):
        B, S, D = x.shape
        H = 32; Dh = D // H
        qkv = (lambda x, *d: x.permute(*d))((x @ wqkv).reshape(B, S, 3, H, Dh), 2, 0, 3, 1, 4)
        q, k, v = qkv[0], qkv[1], qkv[2]
        scale = Dh ** -0.5
        scores = torch.einsum("bhqd,bhkd->bhqk", q, k) * scale
        p = _softmax(scores, axis=-1)
        o = torch.einsum("bhqk,bhkd->bhqd", p, v)
        return (lambda x, *d: x.permute(*d))(o, 0, 2, 1, 3).reshape(B, S, D) @ wo

    def _B_ref(x, w_gate, w_up, w_down):
        return (_gelu(x @ w_gate) * (x @ w_up)) @ w_down

    x = A_x
    h = x + _A_ref(_layernorm(x, axis=-1), A_wqkv, A_wo)
    h2 = h + _B_ref(_layernorm(h, axis=-1), B_w_gate, B_w_up, B_w_down)
    return h2
```

```python
NAME = "sequential_preLN__softmax_full_mha__geglu_ffn__prompt"
S, D, F, H, DH = 2048, 640, 1728, 32, 20
QF  = 0x0
KV  = 0x280000
OB  = 0x840000
HB  = 0xB00000
ST  = 0xE00000
CS  = 0xE40000
LN1 = 0xE50000
ACT = 0x1000000
WFF = 0x1700000
WPO = 0x1B80000
WDN = 0x1C80000
WS_REC = 0x2000000
BIG = 0x2000000
VBLK = 352
TILE = 1280 + 4 * VBLK
HEADKV = 64 * TILE
QTILE = 1280
HEADQ = 64 * QTILE

class Asm:
    def __init__(self):
        self.L = []
        self.uid = 0
    def __call__(self, s):
        for ln in s.split("\n"):
            ln = ln.strip()
            if not ln: continue
            if ln.endswith(":") or ln.startswith("."):
                self.L.append(ln)
            else:
                self.L.append("    " + ln)
    def c(self, s):
        self.L.append("    ; " + s)
    def label(self, base):
        self.uid += 1
        return f"L{base}_{self.uid}"
    def text(self):
        return "\n".join(self.L) + "\n"

def vr(b, n=1):
    return f"v{b}" if n == 1 else f"v[{b}:{b+n-1}]"
def ar(b, n=1):
    return f"a{b}" if n == 1 else f"a[{b}:{b+n-1}]"
def sr(b, n=1):
    return f"s{b}" if n == 1 else f"s[{b}:{b+n-1}]"

def kstart(a, name):
    a(f".globl {name}\n.p2align 8\n.type {name},@function\n{name}:")

def kdesc(name, vgpr, sgpr=96, accum=None):
    if accum is None:
        accum = (vgpr + 3) // 4 * 4
    return f""".p2align 6
.amdhsa_kernel {name}
  .amdhsa_next_free_vgpr {vgpr}
  .amdhsa_next_free_sgpr {sgpr}
  .amdhsa_accum_offset {accum}
  .amdhsa_group_segment_fixed_size 0
  .amdhsa_kernarg_size 80
  .amdhsa_user_sgpr_count 2
  .amdhsa_user_sgpr_kernarg_segment_ptr 1
  .amdhsa_system_sgpr_workgroup_id_x 1
.end_amdhsa_kernel
"""

def srd(a, d, p, nrec):
    a(f"s_mov_b32 s{d}, s{p}")
    a(f"s_and_b32 s{d+1}, s{p+1}, 0xffff")
    a(f"s_mov_b32 s{d+2}, {nrec}")
    a(f"s_mov_b32 s{d+3}, 0x20000")

def interleave(mf, others, lead=0):
    out = []
    n = len(mf)
    k = len(others)
    idx = 0
    for i, m in enumerate(mf):
        out.append(m)
        end = (k * (i + 1) + n - 1) // n
        out += others[idx:end]
        idx = end
    return out

import os
PROF = int(os.environ.get("PROF", "0"))
TSOFF = 0x1F00000
def prof_start(a):
    if not PROF: return
    a("s_memrealtime s[80:81]\ns_memtime s[82:83]")
def prof_mark(a, i):
    if not PROF: return
    a(f"s_memtime s[{84+2*i}:{85+2*i}]")
def prof_end(a, kidx, wsrd, nmarks, vt=(200, 201)):
    if not PROF: return
    if PROF == 2:
        lab = a.label("dg")
        a(f"s_cmp_lg_u32 s2, 8\ns_cbranch_scc1 {lab}")
        a("s_waitcnt vmcnt(0) lgkmcnt(0)\ns_memrealtime s[78:79]\ns_load_dwordx2 s[76:77], s[0:1], 64\ns_waitcnt lgkmcnt(0)")
        a(f"s_sub_u32 s76, s76, {512*kidx}\ns_subb_u32 s77, s77, 0\ns_mov_b64 exec, 1")
        va, vd = vt
        a(f"v_mov_b32 v{va}, {8*kidx}\nv_mov_b32 v{vd}, s80\nglobal_store_dword v{va}, v{vd}, s[76:77]\ns_nop 1\nv_mov_b32 v{vd}, s78\nglobal_store_dword v{va}, v{vd}, s[76:77] offset:4")
        a(f"{lab}:")
        return
    a("s_waitcnt vmcnt(0) lgkmcnt(0)\ns_memtime s[94:95]\ns_memrealtime s[78:79]\ns_waitcnt lgkmcnt(0)")
    a(f"s_lshl_b32 s77, s2, 5\ns_add_u32 s77, s77, {TSOFF + kidx*16384}")
    a("s_mov_b64 exec, 1")
    va, vd = vt
    a(f"v_mov_b32 v{va}, 0")
    vals = ["s80", "s78"] + [f"s{84+2*i}" for i in range(nmarks)] + ["s94"]
    a("s_getreg_b32 s76, hwreg(HW_REG_XCC_ID)")
    a(f"v_mov_b32 v{vd}, s76")
    a(f"buffer_store_dword v{vd}, v{va}, s[{wsrd}:{wsrd+3}], s77 offen offset:28")
    a("s_nop 1")
    for j, s in enumerate(vals):
        if j >= 2:
            a(f"s_sub_u32 {s}, {s}, s82")
        a(f"v_mov_b32 v{vd}, {s}")
        a(f"buffer_store_dword v{vd}, v{va}, s[{wsrd}:{wsrd+3}], s77 offen offset:{4*j}")
        a("s_nop 1")

def prefetch_code(a, tag, start_label, nblk, vlane, vtmp, vdst, sp=70):
    if os.environ.get("NOCPF"): return
    a(f"s_getpc_b64 s[{sp}:{sp+1}]")
    a(f"Lpc_{tag}:")
    a(f"s_add_u32 s{sp}, s{sp}, ({start_label}-Lpc_{tag})&0xffffffff")
    a(f"s_addc_u32 s{sp+1}, s{sp+1}, (({start_label}-Lpc_{tag})>>32)&0xffffffff")
    a(f"v_lshlrev_b32 v{vtmp}, 7, v{vlane}")
    for i in range(nblk):
        a(f"v_min_u32 v{vdst+1}, Lcode_end-{start_label}-4, v{vtmp}")
        a(f"global_load_dword v{vdst}, v{vdst+1}, s[{sp}:{sp+1}]")
        if i < nblk - 1: a(f"v_add_u32 v{vtmp}, 8192, v{vtmp}")

def prefetch_rows(a, srd_, nlines, n, stride, sbase, vlane, vt, smagic):
    if os.environ.get("NOWPF"): return
    magic = (65536 + n - 1) // n
    a(f"s_mov_b32 s{smagic}, {magic}")
    for i in range((nlines + 63) // 64):
        a(f"""v_add_u32 v{vt}, {64*i}, v{vlane}
        v_mul_u32_u24 v{vt+1}, s{smagic}, v{vt}
        v_lshrrev_b32 v{vt+1}, 16, v{vt+1}
        v_mad_i32_i24 v{vt}, v{vt+1}, {-n}, v{vt}
        v_mul_u32_u24 v{vt+1}, {stride}, v{vt+1}
        v_lshl_add_u32 v{vt}, v{vt}, 7, v{vt+1}
        buffer_load_dword v{vt+2}, v{vt}, s[{srd_}:{srd_+3}], s{sbase} offen""")
```
